```python
import torch

def _softmax(x, axis=-1):
    return torch.softmax(x, dim=axis)
def _gelu(x):
    return torch.nn.functional.gelu(x, approximate="tanh")
def _silu(x):
    return torch.nn.functional.silu(x)
def _sigmoid(x):
    return torch.sigmoid(x)
def _layernorm(x, axis=-1, eps=1e-5):
    m = x.mean(dim=axis, keepdim=True)
    v = x.var(dim=axis, keepdim=True, unbiased=False)
    return (x - m) / torch.sqrt(v + eps)
def _scatter_add(tgt, idx, src, axis=0):
    return tgt.clone().index_add_(axis, idx, src)
def _segment_sum(src, seg, n):
    out = torch.zeros((n,) + src.shape[1:], dtype=src.dtype)
    return out.index_add_(0, seg, src)
def _pad(x, pw):
    flat = tuple(v for pair in reversed(pw) for v in pair)
    return torch.nn.functional.pad(x, flat)

kernel_name = 'concat_heads__gqa_block_cached__mha_block_cached__near_ridge'

def setup_inputs():

    _w = (lambda a: (lambda t: t.to(torch.bfloat16) if t.is_floating_point() else t)(torch.as_tensor(a)))
    def _A_setup():
        B, Sq, D = 16, 32, 1024
        Hq, Hkv, Sk, Dh = 32, 4, 32, 128
        assert Hq % Hkv == 0, (Hq, Hkv)
        return {
            "x": _w((lambda *s: torch.randn(*s, dtype=torch.bfloat16) * 0.8)(B, Sq, D)),
            "k_cache": _w((lambda *s: torch.randn(*s, dtype=torch.bfloat16) * 0.8)(B, Hkv, Sk, Dh)),
            "v_cache": _w((lambda *s: torch.randn(*s, dtype=torch.bfloat16) * 0.05)(B, Hkv, Sk, Dh)),
            "wq": _w((lambda *s: torch.randn(*s, dtype=torch.bfloat16) * 0.8)(D, Hq * Dh) * (D ** -0.5)),
            "wo": _w((lambda *s: torch.randn(*s, dtype=torch.bfloat16) * 0.05)(Hq * Dh, D) * ((Hq * Dh) ** -0.5)),
        }
    _A_in = _A_setup()

    def _B_setup():
        B, Sq, D = 16, 32, 1024
        H, Sk, Dh = 32, 32, 128
        return {
            "x": _w((lambda *s: torch.randn(*s, dtype=torch.bfloat16) * 0.8)(B, Sq, D)),
            "k_cache": _w((lambda *s: torch.randn(*s, dtype=torch.bfloat16) * 0.8)(B, H, Sk, Dh)),
            "v_cache": _w((lambda *s: torch.randn(*s, dtype=torch.bfloat16) * 0.05)(B, H, Sk, Dh)),
            "wq": _w((lambda *s: torch.randn(*s, dtype=torch.bfloat16) * 0.8)(D, H * Dh) * (D ** -0.5)),
            "wo": _w((lambda *s: torch.randn(*s, dtype=torch.bfloat16) * 0.05)(H * Dh, D) * ((H * Dh) ** -0.5)),
        }
    _B_in = _B_setup()

    return {
        "A_x": _A_in["x"],
        "A_k_cache": _A_in["k_cache"],
        "A_v_cache": _A_in["v_cache"],
        "A_wq": _A_in["wq"],
        "A_wo": _A_in["wo"],
        "B_x": _B_in["x"],
        "B_k_cache": _B_in["k_cache"],
        "B_v_cache": _B_in["v_cache"],
        "B_wq": _B_in["wq"],
        "B_wo": _B_in["wo"],
    }

def reference(A_x, A_k_cache, A_v_cache, A_wq, A_wo, B_x, B_k_cache, B_v_cache, B_wq, B_wo):
    def _A_ref(x, k_cache, v_cache, wq, wo):
        B, Sq, D = x.shape
        Hq, Dh = 32, 128
        Hkv = k_cache.shape[1]
        rep = Hq // Hkv
        q = (lambda x, *d: x.permute(*d))((x @ wq).reshape(B, Sq, Hq, Dh), 0, 2, 1, 3)
        k = (lambda x, n, axis: torch.repeat_interleave(x, n, dim=axis))(k_cache, rep, axis=1)
        v = (lambda x, n, axis: torch.repeat_interleave(x, n, dim=axis))(v_cache, rep, axis=1)
        scores = torch.einsum("bhqd,bhkd->bhqk", q, k) * (Dh ** -0.5)
        p = _softmax(scores, axis=-1)
        o = torch.einsum("bhqk,bhkd->bhqd", p, v)
        return (lambda x, *d: x.permute(*d))(o, 0, 2, 1, 3).reshape(B, Sq, Hq * Dh) @ wo

    def _B_ref(x, k_cache, v_cache, wq, wo):
        B, Sq, D = x.shape
        H, Dh = 32, 128
        q = (lambda x, *d: x.permute(*d))((x @ wq).reshape(B, Sq, H, Dh), 0, 2, 1, 3)
        scores = torch.einsum("bhqd,bhkd->bhqk", q, k_cache) * (Dh ** -0.5)
        p = _softmax(scores, axis=-1)
        o = torch.einsum("bhqk,bhkd->bhqd", p, v_cache)
        return (lambda x, *d: x.permute(*d))(o, 0, 2, 1, 3).reshape(B, Sq, H * Dh) @ wo

    a = _A_ref(A_x, A_k_cache, A_v_cache, A_wq, A_wo)
    b = _B_ref(B_x, B_k_cache, B_v_cache, B_wq, B_wo)
    return torch.concatenate([a, b], axis=-1)
```

```python
NAME = "concat_heads__gqa_block_cached__mha_block_cached__near_ridge"
class A:
    def __init__(s): s.l = []
    def __call__(s, t):
        for x in t.strip("\n").split("\n"): s.l.append("    " + x.strip() if not x.strip().endswith(":") else x.strip())
    def text(s): return "\n".join(s.l) + "\n"
def header(launch_lines):
    ref = open("cdna_kernels/%s.s.ref" % NAME).read().split("\n")
    cm = [x for x in ref if x.startswith(";") and "@launch" not in x]
    return "\n".join(cm + launch_lines) + '\n.amdgcn_target "amdgcn-amd-amdhsa--gfx950"\n.text\n'
def kern_open(name): return ".globl %s\n.p2align 8\n.type %s,@function\n%s:\n" % (name, name, name)
def desc(name, vgpr, accum, sgpr=102):
    return (".p2align 6\n.amdhsa_kernel %s\n  .amdhsa_next_free_vgpr %d\n  .amdhsa_next_free_sgpr %d\n  .amdhsa_accum_offset %d\n"
            "  .amdhsa_group_segment_fixed_size 0\n  .amdhsa_kernarg_size 104\n  .amdhsa_user_sgpr_count 2\n"
            "  .amdhsa_user_sgpr_kernarg_segment_ptr 1\n  .amdhsa_system_sgpr_workgroup_id_x 1\n.end_amdhsa_kernel\n") % (name, vgpr, sgpr, accum)
def srd(a, d, b, nbytes):
    a("s_mov_b32 s%d, s%d\ns_and_b32 s%d, s%d, 0xffff\ns_mov_b32 s%d, 0x%x\ns_mov_b32 s%d, 0x20000" % (d, b, d + 1, b + 1, d + 2, nbytes, d + 3))
```

```python
import sys
from gl import *
WS_O = 0; WS_P = 16 << 20; WS_F1 = 48 << 20; WS_F2 = WS_F1 + (1 << 20); WS_ST = 128 << 20
class G(A):
    def __init__(s): super().__init__(); s.vm = []; s.lg = []
    def vmem(s, t, tag): s(t); s.vm.append(tag)
    def ds(s, t, tag): s(t); s.lg.append(tag)
    def _n(s, q, tag):
        idx = [i for i, t in enumerate(q) if t == tag]
        if not idx: return None
        n = len(q) - 1 - idx[-1]; del q[:idx[-1] + 1]; return n
    def wait(s, vm=None, lg=None):
        p = []
        if vm == "all": p.append("vmcnt(0)"); s.vm.clear()
        elif vm is not None:
            n = s._n(s.vm, vm)
            if n is not None: assert n < 64; p.append("vmcnt(%d)" % n)
        if lg == "all": p.append("lgkmcnt(0)"); s.lg.clear()
        elif lg is not None:
            n = s._n(s.lg, lg)
            if n is not None: assert n < 16, n; p.append("lgkmcnt(%d)" % n)
        if p: s("s_waitcnt " + " ".join(p))
def R(b, n=4, f="v"): return "%s[%d:%d]" % (f, b, b + n - 1)
ACC = 64; AF = (128, 144); BF = (160, 164); QP = 168; KF = 200; SA = 232; PP = 248
VWQ = 10; VX = 14; VWO = 18; VK = 22; VV = 26; VT = 28; VXR = 40; VT2 = 52
def gen(fn, stag=(0, 0, 0), ntq="", nto="", ntkv="", ntx="", stamps=False, pre_wo=1):
    a = G(); ns = [0]
    def stamp():
        if stamps: a("s_memrealtime s[%d:%d]\ns_waitcnt lgkmcnt(0)" % (70 + 2 * ns[0], 71 + 2 * ns[0])); a.lg.clear(); ns[0] += 1
    a("s_cmp_ge_u32 s2, 256\ns_cbranch_scc1 L_end")
    a("s_load_dwordx16 s[4:19], s[0:1], 0\ns_load_dwordx8 s[20:27], s[0:1], 64\ns_load_dwordx2 s[28:29], s[0:1], 96")
    if stamps: a("s_memtime s[98:99]")
    stamp()
    a("""s_and_b32 s30, s2, 7
    s_lshr_b32 s31, s2, 3
    s_lshr_b32 s32, s30, 2
    s_and_b32 s33, s30, 3
    s_lshr_b32 s34, s31, 3
    s_and_b32 s35, s31, 7
    v_lshrrev_b32 v1, 6, v0
    v_and_b32 v0, 63, v0
    s_lshl_b32 s37, s33, 3
    v_readfirstlane_b32 s36, v1
    s_add_u32 s37, s37, s35
    s_lshl_b32 s38, s34, 2
    v_lshrrev_b32 v2, 4, v0
    v_and_b32 v3, 15, v0
    s_add_u32 s38, s38, s36""")
    a("v_lshlrev_b32 v4, 2, v2\nv_xor_b32 v4, v4, v3\nv_lshlrev_b32 v4, 4, v4")
    a("s_lshl_b32 s39, s36, 17\ns_lshl_b32 s40, s37, 8\ns_add_u32 s39, s39, s40\nv_lshl_add_u32 v5, v2, 13, v4\nv_add_u32 v%d, s39, v5" % VWQ)
    for i in range(1, 4): a("v_add_u32 v%d, %d, v%d" % (VWQ + i, i * (32768 - 1024), VWQ))
    a("v_lshrrev_b32 v5, 3, v0\nv_and_b32 v6, 7, v0\nv_xor_b32 v6, v6, v2\nv_lshlrev_b32 v6, 4, v6\nv_lshl_add_u32 v5, v5, 11, v6\ns_lshl_b32 s39, s38, 16\nv_add_u32 v%d, s39, v5" % VX)
    a("v_xor_b32 v5, 64, v%d" % VX)
    a("v_add_u32 v%d, %d, v5\nv_add_u32 v%d, %d, v%d\nv_add_u32 v%d, %d, v5" % (VX + 1, 16384 - 1024, VX + 2, 2 * (16384 - 1024), VX, VX + 3, 3 * (16384 - 1024)))
    a("s_waitcnt lgkmcnt(0)\ns_cmp_eq_u32 s32, 0")
    for d, A_, B_ in ((4, 4, 14), (6, 6, 16), (8, 8, 18), (10, 10, 20), (12, 12, 22)):
        a("s_cselect_b64 s[%d:%d], s[%d:%d], s[%d:%d]" % (d, d + 1, A_, A_ + 1, B_, B_ + 1))
    a("s_cselect_b32 s41, 1, 8\ns_lshl_b32 s41, s41, 19")
    SX, SQ, SK, SV, SO, SW, SD, SOUT = 44, 48, 52, 56, 60, 64, 16, 20
    srd(a, SX, 4, 1 << 20); srd(a, SQ, 10, 8 << 20); srd(a, SW, 28, 1 << 28)
    a("s_mul_i32 s42, s35, %d\ns_mul_i32 s39, s34, %d\ns_add_u32 s42, s42, s39\ns_mul_i32 s39, s33, %d\ns_add_u32 s42, s42, s39\ns_lshl_b32 s43, s36, 12\ns_lshl_b32 s68, s36, 13" % stag)
    a("""s_lshl_b32 s39, s30, 4
    s_add_u32 s39, s39, s38
    s_lshl_b32 s14, s39, 7
    s_add_u32 s14, s14, %d
    s_lshl_b32 s69, s39, 16
    s_lshl_b32 s39, s32, 4
    s_add_u32 s39, s39, s38
    s_lshl_b32 s39, s39, 3
    s_add_u32 s39, s39, s35
    s_lshl_b32 s15, s39, 7
    s_add_u32 s15, s15, %d
    s_mul_i32 s3, s39, 49152
    s_add_u32 s3, s3, %d
    v_cmp_eq_u32 vcc, 0, v0
    v_mov_b32 v5, 0x7ffffff0
    s_lshl_b32 s39, s35, 2
    v_mov_b32 v6, s39
    v_cndmask_b32 v8, v5, v6, vcc
    s_lshl_b32 s39, s33, 2
    v_mov_b32 v6, s39
    v_cndmask_b32 v9, v5, v6, vcc
    v_mov_b32 v7, 0""" % (WS_F1, WS_F2, WS_P))
    a.vmem("buffer_store_dword v7, v8, s[%d:%d], s14 offen sc1" % (SW, SW + 3), "clr")
    a.vmem("buffer_store_dword v7, v9, s[%d:%d], s15 offen sc1" % (SW, SW + 3), "clr")
    def dma_ops(s):
        sl = (s % 5) * 32768; ops = []
        def mk(pre, v, srd_, so, i, aux):
            return lambda: (a(pre) if pre else None, a.vmem("buffer_load_dwordx4 v%d, s[%d:%d], s%d offen offset:%d %s lds" % (v, srd_, srd_ + 3, so, i * 1024, aux), "st%d" % s))
        if s < 16:
            for i in range(4): ops.append(mk("s_add_u32 s39, s42, %d\ns_and_b32 s39, s39, 15\ns_add_u32 m0, s43, %d\ns_lshl_b32 s40, s39, 19" % (s, sl) if i == 0 else "", VWQ + i, SQ, 40, i, ntq))
            for i in range(4): ops.append(mk("s_add_u32 m0, s43, %d\ns_lshl_b32 s40, s39, 7" % (sl + 16384) if i == 0 else "", VX + i, SX, 40, i, ntx))
        elif s < 18:
            for i in range(8): ops.append(mk("s_add_u32 m0, s68, %d\ns_add_u32 s40, s31, %d" % (sl + i * 1024, i * 1024) if i % 4 == 0 else "", VK + i % 4 if s == 16 else VV, SK if s == 16 else SV, 40, i % 4, ntkv))
        else:
            for i in range(8):
                pre = ""
                if i == 0: pre = "s_add_u32 s39, s35, %d\ns_and_b32 s39, s39, 7\ns_add_u32 m0, s68, %d\ns_lshl_b32 s40, s39, 18" % (s - 18, sl)
                if i == 4: pre = "s_add_u32 m0, s68, %d\ns_add_u32 s40, s40, 32768" % (sl + 4096)
                ops.append(mk(pre, VWO + i % 4, SO, 40, i % 4, nto))
        return ops
    for s in range(5):
        for op in dma_ops(s): op()
    srd(a, SK, 6, 0); a("s_mov_b32 s%d, s41" % (SK + 2)); srd(a, SV, 8, 0); a("s_mov_b32 s%d, s41" % (SV + 2))
    srd(a, SO, 12, 8 << 20); srd(a, SD, 26, 256); srd(a, SOUT, 24, 2 << 20)
    a("s_lshl_b32 s39, s38, 5\ns_add_u32 s39, s39, s37\ns_lshl_b32 s40, s38, 2\ns_add_u32 s40, s40, s33\ns_cmp_eq_u32 s32, 0\ns_cselect_b32 s31, s40, s39\ns_lshl_b32 s31, s31, 13")
    a("v_lshl_add_u32 v%d, v2, 8, v4" % VV)
    for i in range(4): a("v_add_u32 v5, %d, v2\nv_xor_b32 v5, v5, v3\nv_lshlrev_b32 v5, 4, v5\nv_lshl_add_u32 v%d, v2, 8, v5" % (4 * i, VK + i))
    a("s_lshl_b32 s39, s33, 21\ns_lshl_b32 s40, s36, 16\ns_add_u32 s39, s39, s40\ns_lshl_b32 s40, s35, 8\ns_add_u32 s39, s39, s40\nv_lshl_add_u32 v5, v2, 11, v4\nv_add_u32 v%d, s39, v5" % VWO)
    for i in range(1, 4): a("v_add_u32 v%d, %d, v%d" % (VWO + i, i * (8192 - 1024), VWO))
    a("""v_lshrrev_b32 v5, 2, v3
    v_lshrrev_b32 v6, 5, v0
    v_and_b32 v1, 1, v2
    v_lshlrev_b32 v1, 5, v1
    v_and_b32 v7, 1, v0
    v_lshl_add_u32 v1, v7, 4, v1
    v_bfe_u32 v7, v0, 1, 1
    v_lshl_add_u32 v1, v7, 3, v1
    v_lshl_add_u32 v1, v5, 8, v1
    v_lshl_add_u32 v1, v5, 6, v1
    v_lshl_add_u32 v27, v6, 10, v1
    v_lshl_add_u32 v1, v6, 11, v1""")
    for gidx in range(3):
        for mb in range(4):
            a("v_xor_b32 v5, %d, v1\nv_add_u32 v%d, %d, v5" % (mb * 64, VT + gidx * 4 + mb, gidx * 65536))
    for mb in range(4):
        a("s_add_u32 s39, s33, %d\ns_and_b32 s39, s39, 3\ns_lshl_b32 s39, s39, 6\nv_xor_b32 v5, s39, v1" % mb)
        for gidx in range(3): a("v_add_u32 v%d, %d, v5" % (VT2 + gidx * 4 + mb, gidx * 65536))
    a("v_and_b32 v5, 31, v0\nv_bfe_u32 v7, v0, 1, 3\nv_xor_b32 v7, v7, v6\nv_lshlrev_b32 v7, 4, v7\nv_lshl_add_u32 v7, v5, 7, v7\ns_add_u32 s39, s43, 16384\nv_add_u32 v7, s39, v7")
    for gidx in range(3):
        for j in range(4): a("v_xor_b32 v5, %d, v7\nv_add_u32 v%d, %d, v5" % (j * 32, VXR + gidx * 4 + j, gidx * 65536))
    a("""s_lshl_b32 s39, s30, 5
    s_lshl_b32 s40, s34, 3
    s_add_u32 s39, s39, s40
    v_and_b32 v5, 7, v0
    v_add_u32 v5, s39, v5
    s_add_u32 s39, s39, s35
    s_and_b32 s40, s39, 0x9f
    v_and_b32 v6, 3, v0
    v_lshl_add_u32 v6, v6, 5, s40
    v_cmp_gt_u32 vcc, 8, v0
    s_cmp_eq_u32 s36, 0
    s_cselect_b32 s40, 0, 0x7fff0000
    v_cndmask_b32 v4, v6, v5, vcc
    v_add_u32 v4, s40, v4
    s_add_u32 s39, s39, s40
    v_cmp_eq_u32 vcc, 0, v0
    v_mov_b32 v5, 0x7fff0000
    v_mov_b32 v6, s39
    v_cndmask_b32 v1, v5, v6, vcc
    v_mov_b32 v7, 1""")
    def rdA(slot, row0, mb, st, base, tag):
        gi, off = slot // 2, (slot % 2) * 32768 + row0 * 256
        return [lambda k=k: a.ds("ds_read_b64_tr_b16 %s, v%d offset:%d" % (R(AF[st] + mb * 4 + 2 * k, 2), base + gi * 4 + mb, off + k * 1024), tag + "a%d" % mb) for k in range(2)]
    def reads(s, j, st):
        tag = "s%dk%d" % (s, j); sl = s % 5; r = []
        if s < 16: r.append(lambda: a.ds("ds_read_b128 %s, v%d offset:%d" % (R(BF[st]), VXR + (sl // 2) * 4 + j, (sl % 2) * 32768), tag + "b"))
        for mb in range(4): r += rdA(sl, 16 * j, mb, st, VT if s < 16 else VT2, tag)
        return r
    def kstep(s, j, st, nxt, extra, bop, first, pre=None):
        nxt = list(nxt); tag = "s%dk%d" % (s, j)
        for mb in range(4):
            a.wait(lg=tag + "a%d" % mb)
            a("v_mfma_f32_32x32x16_bf16 %s, %s, %s, %s" % (R(ACC + mb * 16, 16), R(AF[st] + mb * 4), bop, "0" if first else R(ACC + mb * 16, 16)))
            for _ in range(3):
                if nxt and mb < 3: nxt.pop(0)()
            if mb == 3:
                for e in extra: e()
        assert not nxt
    a.wait(vm="st0"); a("s_barrier")
    a.vmem("buffer_store_byte v7, v1, s[%d:%d], 0 offen sc1" % (SD, SD + 3), "reg")
    stamp()
    for r in reads(0, 0, 0): r()
    pend = []; st = 0
    last1 = 18 + pre_wo - 1
    for s in range(16):
        for j in range(4):
            if j == 3:
                if s < 15: a.wait(vm="st%d" % (s + 1), lg="all"); a("s_barrier")
                else: a.wait(lg="all"); a("s_barrier")
                assert not pend
                if s + 5 <= last1: pend = dma_ops(s + 5)
                if s == 10: a.vmem("buffer_load_ubyte v6, v4, s[%d:%d], 0 offen sc1" % (SD, SD + 3), "chk")
            nxt = reads(s, j + 1, st ^ 1) if j < 3 else (reads(s + 1, 0, st ^ 1) if s < 15 else [])
            ex = pend[:2]; pend = pend[2:]
            kstep(s, j, st, nxt, ex, R(BF[st]), s == 0 and j == 0)
            st ^= 1
    for e in pend: e()
    stamp()
    a("v_and_b32 v5, 31, v0\nv_lshrrev_b32 v7, 5, v0\nv_xor_b32 v7, v7, v3\nv_lshlrev_b32 v7, 4, v7\nv_lshl_add_u32 v7, v5, 8, v7\nv_add_u32 v7, s68, v7")
    a.wait(vm="st16")
    for j in range(8):
        a("v_xor_b32 v5, %d, v7" % (j * 32)); a.ds("ds_read_b128 %s, v5 offset:32768" % R(KF + 4 * j), "k%d" % j)
    a("s_cmp_lg_u32 s36, 0\ns_cbranch_scc1 L_regok\ns_mov_b32 s39, 0\nL_regspin:\nv_cmp_eq_u32 vcc, 0, v6\ns_add_u32 s39, s39, 1\ns_cbranch_vccz L_regok\ns_cmp_gt_u32 s39, 0x100000\ns_cbranch_scc1 L_regok")
    a("buffer_load_ubyte v6, v4, s[%d:%d], 0 offen sc1\ns_waitcnt vmcnt(0)\ns_branch L_regspin\nL_regok:" % (SD, SD + 3))
    for j in range(8):
        for q in range(4): a("v_cvt_pk_bf16_f32 v%d, v%d, v%d" % (QP + 4 * j + q, ACC + 8 * j + 2 * q, ACC + 8 * j + 2 * q + 1))
        if j > 0:
            a.wait(lg="k%d" % (j - 1)); a("v_mfma_f32_32x32x16_bf16 %s, %s, %s, %s" % (R(SA, 16), R(KF + 4 * j - 4), R(QP + 4 * j - 4), "0" if j == 1 else R(SA, 16)))
    a("v_add_u32 v27, s68, v27\nv_add_u32 v27, 65536, v27")
    a.wait(lg="k7"); a("v_mfma_f32_32x32x16_bf16 %s, %s, %s, %s" % (R(SA, 16), R(KF + 28), R(QP + 28), R(SA, 16)))
    a.wait(vm="st17")
    for ks in range(2):
        for mb in range(4):
            a("v_xor_b32 v5, %d, v27" % (mb * 64))
            for k in range(2): a.ds("ds_read_b64_tr_b16 %s, v5 offset:%d" % (R(AF[ks] + mb * 4 + 2 * k, 2), (16 * ks + 8 * k) * 256), "v%d" % ks)
        if ks == 0: a.wait(lg="v0")
    a("s_mov_b32 s39, 0x3e0293ee")
    a("v_max3_f32 v5, v%d, v%d, v%d" % (SA, SA + 1, SA + 2))
    for r in range(3, 15, 2): a("v_max3_f32 v5, v5, v%d, v%d" % (SA + r, SA + r + 1))
    a("v_max_f32 v5, v5, v%d\nv_mov_b32 v7, v5\ns_nop 1\nv_permlane32_swap_b32 v5, v7\nv_max_f32 v5, v5, v7\nv_mul_f32 v5, s39, v5" % (SA + 15))
    for r in range(16): a("v_fma_f32 v%d, v%d, s39, -v5" % (SA + r, SA + r))
    for r in range(16): a("v_exp_f32 v%d, v%d" % (SA + r, SA + r))
    a("v_add_f32 v5, v%d, v%d\nv_add_f32 v7, v%d, v%d" % (SA, SA + 1, SA + 2, SA + 3))
    for r in range(4, 16, 2): a("v_add_f32 v5, v5, v%d\nv_add_f32 v7, v7, v%d" % (SA + r, SA + r + 1))
    a("v_add_f32 v5, v5, v7\nv_mov_b32 v7, v5\ns_nop 1\nv_permlane32_swap_b32 v5, v7\nv_add_f32 v5, v5, v7\nv_rcp_f32 v5, v5\ns_nop 0")
    for r in range(16): a("v_mul_f32 v%d, v%d, v5" % (SA + r, SA + r))
    for q in range(8): a("v_cvt_pk_bf16_f32 v%d, v%d, v%d" % (PP + q, SA + 2 * q, SA + 2 * q + 1))
    a("v_lshlrev_b32 v1, 4, v0\ns_lshl_b32 s39, s35, 13\ns_add_u32 s41, s69, s39")
    a.wait(lg="all")
    for mb in range(4):
        for ks in range(2): a("v_mfma_f32_32x32x16_bf16 %s, %s, %s, %s" % (R(ACC + mb * 16, 16), R(AF[ks] + mb * 4), R(PP + 4 * ks), "0" if ks == 0 else R(ACC + mb * 16, 16)))
    a.wait(vm="st18"); a("s_barrier\ns_add_u32 s40, s41, 4096")
    for r in reads(18, 0, 0): r()
    for j in range(8):
        if j == 6: a("s_nop 3")
        for q in range(4): a("v_cvt_pk_bf16_f32 v%d, v%d, v%d" % (QP + 4 * j + q, ACC + 8 * j + 2 * q, ACC + 8 * j + 2 * q + 1))
        a.vmem("buffer_store_dwordx4 %s, v1, s[%d:%d], s%d offen offset:%d sc1" % (R(QP + 4 * j), SW, SW + 3, 41 if j < 4 else 40, (j % 4) * 1024), "ost")
    stamp()
    pend = []
    for s in range(last1 + 1, 23): pend += dma_ops(s)
    st = 0
    for i in range(8):
        s = 18 + i
        for j in range(8):
            if j == 7 and i < 7:
                if i == 0:
                    for e in pend: e()
                    pend = []
                    a.wait(vm="ost"); a("v_mov_b32 v7, 1\nv_and_b32 v5, 7, v0\nv_lshlrev_b32 v5, 2, v5")
                    a.vmem("buffer_store_dword v7, v8, s[%d:%d], s14 offen sc1" % (SW, SW + 3), "f1")
                    stamp()
                    a("s_mov_b32 s39, 0\nL_f1:\nbuffer_load_dword v6, v5, s[%d:%d], s14 offen sc1\ns_add_u32 s39, s39, 1\ns_cmp_gt_u32 s39, 0x100000\ns_cbranch_scc1 L_f1ok\ns_waitcnt vmcnt(0)\nv_cmp_ne_u32 vcc, 1, v6\ns_cbranch_vccnz L_f1\nL_f1ok:" % (SW, SW + 3))
                    a.vm.clear()
                    stamp()
                    for ii in range(1, 8):
                        a("s_add_u32 s39, s35, %d\ns_and_b32 s39, s39, 7\ns_lshl_b32 s39, s39, 13\ns_add_u32 s41, s69, s39\ns_add_u32 s40, s41, 4096" % ii)
                        for jj in range(8): a.vmem("buffer_load_dwordx4 %s, v1, s[%d:%d], s%d offen offset:%d sc1" % (R(ii * 32 + jj * 4, 4, "a"), SW, SW + 3, 41 if jj < 4 else 40, (jj % 4) * 1024), "o%d" % ii)
                a.wait(vm="st%d" % (s + 1), lg="all"); a("s_barrier")
                if s + 5 <= 25: pend = dma_ops(s + 5)
            if j == 0 and i > 0: a.wait(vm="o%d" % i)
            if j == 0 and i == 1: stamp()
            nxt = reads(s, j + 1, st ^ 1) if j < 7 else (reads(s + 1, 0, st ^ 1) if i < 7 else [])
            n = 5 if i == 0 else (0 if (i, j) == (0, 7) else 1)
            if (i, j) == (0, 7): n = 0
            if j == 6 and i > 0: n = 8
            ex = pend[:n]; pend = pend[n:]
            kstep(s, j, st, nxt, ex, R(QP + 4 * j) if i == 0 else R(i * 32 + 4 * j, 4, "a"), i == 0 and j == 0)
            st ^= 1
    assert not pend
    stamp()
    for jb in range(1, 4):
        a("s_add_u32 s39, s33, %d\ns_and_b32 s39, s39, 3\ns_mul_i32 s39, s39, 12288\ns_add_u32 s39, s39, %d\ns_add_u32 s%d, s39, s3" % (jb, (jb - 1) * 4096, 39 + jb))
    a("s_nop 4")
    for jb in range(1, 4):
        for q in range(4): a.vmem("buffer_store_dwordx4 %s, v1, s[%d:%d], s%d offen offset:%d sc1" % (R(ACC + jb * 16 + q * 4), SW, SW + 3, 39 + jb, q * 1024), "pst")
    a("s_mul_i32 s39, s33, 12288\ns_add_u32 s40, s39, s3\ns_add_u32 s41, s40, 4096\ns_add_u32 s42, s40, 8192\nv_and_b32 v5, 3, v0\nv_lshlrev_b32 v5, 2, v5")
    a("v_and_b32 v4, 31, v0\nv_lshrrev_b32 v3, 5, v0\nv_lshlrev_b32 v3, 4, v3\nv_lshl_add_u32 v4, v4, 12, v3\ns_lshl_b32 s43, s38, 17\ns_lshl_b32 s39, s32, 11\ns_add_u32 s43, s43, s39\ns_lshl_b32 s39, s35, 8\ns_add_u32 s43, s43, s39\ns_lshl_b32 s39, s33, 6\ns_add_u32 s43, s43, s39")
    a.wait(vm="all")
    a("buffer_store_dword v7, v9, s[%d:%d], s15 offen sc1" % (SW, SW + 3))
    stamp()
    a("s_mov_b32 s39, 0\nL_f2:\nbuffer_load_dword v6, v5, s[%d:%d], s15 offen sc1\ns_add_u32 s39, s39, 1\ns_cmp_gt_u32 s39, 0x100000\ns_cbranch_scc1 L_f2ok\ns_waitcnt vmcnt(0)\nv_cmp_ne_u32 vcc, 1, v6\ns_cbranch_vccnz L_f2\nL_f2ok:" % (SW, SW + 3))
    stamp()
    for jb in range(3):
        for q in range(4): a.vmem("buffer_load_dwordx4 %s, v1, s[%d:%d], s%d offen offset:%d sc1" % (R(128 + jb * 16 + q * 4), SW, SW + 3, 40 + jb, q * 1024), "p%d" % jb)
    for jb in range(3):
        a.wait(vm="p%d" % jb)
        for r in range(16): a("v_add_f32 v%d, v%d, v%d" % (ACC + r, ACC + r, 128 + jb * 16 + r))
    for q in range(8): a("v_cvt_pk_bf16_f32 v%d, v%d, v%d" % (PP + q, ACC + 2 * q, ACC + 2 * q + 1))
    a("buffer_store_dwordx4 %s, v4, s[%d:%d], s43 offen\nbuffer_store_dwordx4 %s, v4, s[%d:%d], s43 offen offset:32" % (R(PP), SOUT, SOUT + 3, R(PP + 4), SOUT, SOUT + 3))
    if stamps:
        a("s_waitcnt vmcnt(0)"); stamp()
        a("s_memtime s[100:101]\ns_getreg_b32 s99, hwreg(HW_REG_XCC_ID)\ns_waitcnt lgkmcnt(0)\ns_sub_u32 s100, s100, s98\ns_cmp_lg_u32 s36, 0\ns_cbranch_scc1 L_end")
        for k in range(16): a("v_mov_b32 v%d, %s" % (128 + k, "s%d" % (70 + 2 * k) if k < ns[0] else ("s99" if k == 14 else "s100" if k == 15 else "0")))
        a("s_lshl_b32 s39, s2, 6\ns_add_u32 s39, s39, %d\nv_cmp_eq_u32 vcc, 0, v0\nv_mov_b32 v5, 0x7ffffff0\ns_nop 1\nv_cndmask_b32 v5, v5, v0, vcc" % WS_ST)
        for k in range(4): a("buffer_store_dwordx4 %s, v5, s[%d:%d], s39 offen offset:%d" % (R(128 + 4 * k), SW, SW + 3, 16 * k))
    a("L_end:\ns_endpgm")
    k = NAME + "_kernel"
    open(fn, "w").write(header(["; @launch grid=(256,1,1) block=(256,1,1) lds=163840"]) + kern_open(k) + a.text() + '.section .rodata,"a"\n' + desc(k, 512, 256))
if __name__ == "__main__":
    gen("k0.s"); gen("k0s.s", stamps=True)
    gen("k1.s", stag=(2, 4, 0), ntq="nt", nto="nt", ntkv="nt"); gen("k1s.s", stag=(2, 4, 0), ntq="nt", nto="nt", ntkv="nt", stamps=True)
```
